```python
import torch

def _softmax(x, axis=-1):
    return torch.softmax(x, dim=axis)
def _gelu(x):
    return torch.nn.functional.gelu(x, approximate="tanh")
def _silu(x):
    return torch.nn.functional.silu(x)
def _sigmoid(x):
    return torch.sigmoid(x)
def _layernorm(x, axis=-1, eps=1e-5):
    m = x.mean(dim=axis, keepdim=True)
    v = x.var(dim=axis, keepdim=True, unbiased=False)
    return (x - m) / torch.sqrt(v + eps)
def _scatter_add(tgt, idx, src, axis=0):
    return tgt.clone().index_add_(axis, idx, src)
def _segment_sum(src, seg, n):
    out = torch.zeros((n,) + src.shape[1:], dtype=src.dtype)
    return out.index_add_(0, seg, src)
def _pad(x, pw):
    flat = tuple(v for pair in reversed(pw) for v in pair)
    return torch.nn.functional.pad(x, flat)

kernel_name = 'sequential_preLN__softmax_full_mha__mixer_s_mlp__prompt'

def setup_inputs():

    _w = (lambda a: (lambda t: t.to(torch.bfloat16) if t.is_floating_point() else t)(torch.as_tensor(a)))
    def _A_setup():
        B, S, D = 1, 2048, 512
        return {
            "x": _w((lambda *s: torch.randn(*s, dtype=torch.bfloat16) * 0.05)(B, S, D)),
            "wqkv": _w((lambda *s: torch.randn(*s, dtype=torch.bfloat16) * 0.05)(D, 3 * D)),
            "wo": _w((lambda *s: torch.randn(*s, dtype=torch.bfloat16) * 0.05)(D, D)),
        }
    _A_in = _A_setup()

    def _B_setup():
        B, S, D, F = 1, 2048, 512, 1376
        return {
            "x":  _w((lambda *s: torch.randn(*s, dtype=torch.bfloat16) * 0.05)(B, S, D)),
            "w1": _w((lambda *s: torch.randn(*s, dtype=torch.bfloat16) * 3.2)(D, D) * (D ** -0.5)),
            "w2": _w((lambda *s: torch.randn(*s, dtype=torch.bfloat16) * 3.2)(D, D) * (D ** -0.5)),
            "w3": _w((lambda *s: torch.randn(*s, dtype=torch.bfloat16) * 3.2)(D, F) * (D ** -0.5)),
            "w4": _w((lambda *s: torch.randn(*s, dtype=torch.bfloat16) * 3.2)(F, D) * (F ** -0.5)),
        }
    _B_in = _B_setup()

    return {
        "A_x": _A_in["x"],
        "A_wqkv": _A_in["wqkv"],
        "A_wo": _A_in["wo"],
        "B_x": _B_in["x"],
        "B_w1": _B_in["w1"],
        "B_w2": _B_in["w2"],
        "B_w3": _B_in["w3"],
        "B_w4": _B_in["w4"],
    }

def reference(A_x, A_wqkv, A_wo, B_x, B_w1, B_w2, B_w3, B_w4):
    def _A_ref(x, wqkv, wo):
        B, S, D = x.shape
        H = 32; Dh = D // H
        qkv = (lambda x, *d: x.permute(*d))((x @ wqkv).reshape(B, S, 3, H, Dh), 2, 0, 3, 1, 4)
        q, k, v = qkv[0], qkv[1], qkv[2]
        scale = Dh ** -0.5
        scores = torch.einsum("bhqd,bhkd->bhqk", q, k) * scale
        p = _softmax(scores, axis=-1)
        o = torch.einsum("bhqk,bhkd->bhqd", p, v)
        return (lambda x, *d: x.permute(*d))(o, 0, 2, 1, 3).reshape(B, S, D) @ wo

    def _B_ref(x, w1, w2, w3, w4):
        B, S, D = x.shape
        h = _gelu(_layernorm(x, axis=-1) @ w1)
        c = D // 4
        g0 = _pad(h[:, :, 0*c:1*c], ((0, 0), (1, 0), (0, 0)))[:, :S, :]
        g1 = _pad(h[:, :, 1*c:2*c], ((0, 0), (0, 1), (0, 0)))[:, 1:, :]
        g2 = _pad(h[:, :, 2*c:3*c], ((0, 0), (2, 0), (0, 0)))[:, :S, :]
        g3 = _pad(h[:, :, 3*c:   ], ((0, 0), (0, 2), (0, 0)))[:, 2:, :]
        hs = torch.concatenate([g0, g1, g2, g3], axis=-1) @ w2
        x1 = x + hs
        h2 = _gelu(_layernorm(x1, axis=-1) @ w3) @ w4
        return x1 + h2

    x = A_x
    h = x + _A_ref(_layernorm(x, axis=-1), A_wqkv, A_wo)
    h2 = h + _B_ref(_layernorm(h, axis=-1), B_w1, B_w2, B_w3, B_w4)
    return h2
```

```python
import sys

NAME = "sequential_preLN__softmax_full_mha__mixer_s_mlp__prompt"
OUT = "cdna_kernels/%s.s" % NAME

S, D, F, H, DH = 2048, 512, 1376, 32, 16

KA_X, KA_WQKV, KA_WO, KA_BX, KA_W1, KA_W2, KA_W3, KA_W4, KA_OUT, KA_DBG, KA_WS = [8 * i for i in range(11)]

WS_WTQKV = 0x0
WS_WTO = 0x180000
WS_WT1 = 0x200000
WS_WT2 = 0x280000
WS_WT3 = 0x300000
WS_WT4 = 0x480000
WS_XN = 0x600000
WS_Q = 0x800000
WS_K = 0xA00000
WS_VT = 0xC00000
WS_O = 0xE00000
WS_H = 0x1000000
WS_LN2 = 0x1200000
WS_LNB = 0x1400000
WS_HH = 0x1600000
WS_X1 = 0x1800000
WS_G3 = 0x1A00000
ACT = S * D * 2

L = []


def e(s):
    L.append("    " + s)


def lab(s):
    L.append(s + ":")


kernels = []


def begin_kernel(name):
    L.append(".globl %s" % name)
    L.append(".p2align 8")
    L.append(".type %s,@function" % name)
    lab(name)


def end_kernel(name, grid, vgprs=256, lds=0):
    lab("L_end_" + name)
    e("s_endpgm")
    kernels.append((name, grid, vgprs, lds))


def srd_from_kernarg(sd, ka_off, nbytes, add=0):
    e("s_load_dwordx2 s[%d:%d], s[0:1], %d" % (sd, sd + 1, ka_off))
    e("s_waitcnt lgkmcnt(0)")
    if add:
        e("s_add_u32 s%d, s%d, 0x%x" % (sd, sd, add))
        e("s_addc_u32 s%d, s%d, 0" % (sd + 1, sd + 1))
    e("s_mov_b32 s%d, 0x%x" % (sd + 2, nbytes))
    e("s_mov_b32 s%d, 0x00020000" % (sd + 3))


def wave_task(sdst, nwaves_total, name):
    e("v_lshrrev_b32 v1, 6, v0")
    e("s_nop 1")
    e("v_readfirstlane_b32 s%d, v1" % sdst)
    e("s_lshl_b32 s3, s2, 2")
    e("s_add_u32 s%d, s%d, s3" % (sdst, sdst))
    e("s_cmp_ge_u32 s%d, %d" % (sdst, nwaves_total))
    e("s_cbranch_scc1 L_end_%s" % name)
    e("v_and_b32 v0, 63, v0")


def wave_sum(v, vt, vaddr):
    for m in (32, 16, 8, 4, 2, 1):
        e("v_xor_b32 v%d, %d, v0" % (vaddr, m))
        e("v_lshlrev_b32 v%d, 2, v%d" % (vaddr, vaddr))
        e("ds_bpermute_b32 v%d, v%d, v%d" % (vt, vaddr, v))
        e("s_waitcnt lgkmcnt(0)")
        e("v_add_f32 v%d, v%d, v%d" % (v, v, vt))


def ln_row_math(vin, vout):
    for i in range(4):
        e("v_lshlrev_b32 v%d, 16, v%d" % (30 + 2 * i, vin + i))
        e("v_and_b32 v%d, 0xffff0000, v%d" % (31 + 2 * i, vin + i))
    e("v_add_f32 v40, v30, v31")
    for i in range(2, 8):
        e("v_add_f32 v40, v40, v%d" % (30 + i))
    wave_sum(40, 41, 42)
    e("v_mul_f32 v40, 0x3b000000, v40")
    for i in range(8):
        e("v_sub_f32 v%d, v%d, v40" % (30 + i, 30 + i))
    e("v_mul_f32 v43, v30, v30")
    for i in range(1, 8):
        e("v_fma_f32 v43, v%d, v%d, v43" % (30 + i, 30 + i))
    wave_sum(43, 41, 42)
    e("v_mov_b32 v44, 0x3727c5ac")
    e("v_fma_f32 v43, v43, 0x3b000000, v44") if False else None
    e("v_mul_f32 v43, 0x3b000000, v43")
    e("v_add_f32 v43, v43, v44")
    e("v_rsq_f32 v43, v43")
    e("s_nop 1")
    for i in range(8):
        e("v_mul_f32 v%d, v%d, v43" % (30 + i, 30 + i))
    for i in range(4):
        e("v_cvt_pk_bf16_f32 v%d, v%d, v%d" % (vout + i, 30 + 2 * i, 31 + 2 * i))


def gen_prep():
    name = "prep_kernel"
    mats = [
        (KA_WQKV, 512, 1536, WS_WTQKV),
        (KA_WO, 512, 512, WS_WTO),
        (KA_W1, 512, 512, WS_WT1),
        (KA_W2, 512, 512, WS_WT2),
        (KA_W3, 512, 1376, WS_WT3),
        (KA_W4, 1376, 512, WS_WT4),
    ]
    counts = [(K // 32) * ((N + 63) // 64) for (_, K, N, _) in mats]
    ntr = sum(counts)
    total = ntr + S
    begin_kernel(name)
    wave_task(20, total, name)
    base = 0
    for mi, (ka, K, N, dst) in enumerate(mats):
        nkt = K // 32
        e("s_cmp_ge_u32 s20, %d" % (base + counts[mi]))
        e("s_cbranch_scc1 L_prep_next%d" % mi)
        e("s_sub_u32 s21, s20, %d" % base)
        if nkt == 16:
            e("s_lshr_b32 s22, s21, 4")
            e("s_and_b32 s23, s21, 15")
        else:
            e("s_mov_b32 s24, 0x5f417d1")
            e("s_mul_hi_u32 s22, s21, s24")
            e("s_mul_i32 s24, s22, 43")
            e("s_sub_u32 s23, s21, s24")
        srd_from_kernarg(4, ka, K * N * 2)
        srd_from_kernarg(8, KA_WS, K * N * 2, add=dst)
        e("s_lshl_b32 s22, s22, 6")
        e("v_add_u32 v2, s22, v0")
        e("s_mov_b32 s25, %d" % N)
        e("v_cmp_gt_u32 vcc, s25, v2")
        e("s_and_saveexec_b64 s[26:27], vcc")
        e("s_cbranch_execz L_end_%s" % name)
        e("s_mul_i32 s24, s23, %d" % (32 * N * 2))
        e("v_lshlrev_b32 v3, 1, v2")
        e("v_add_u32 v3, s24, v3")
        for k in range(32):
            off = k * N * 2
            if off <= 4095:
                e("buffer_load_ushort v%d, v3, s[4:7], 0 offen offset:%d" % (10 + k, off))
            else:
                e("s_mov_b32 s28, %d" % off)
                e("buffer_load_ushort v%d, v3, s[4:7], s28 offen" % (10 + k))
        e("s_waitcnt vmcnt(0)")
        for k in range(16):
            e("v_lshl_or_b32 v%d, v%d, 16, v%d" % (50 + k, 11 + 2 * k, 10 + 2 * k))
        e("s_mov_b32 s25, %d" % (K * 2))
        e("v_mul_lo_u32 v4, v2, s25")
        e("s_lshl_b32 s24, s23, 6")
        e("v_add_u32 v4, s24, v4")
        for j in range(4):
            e("buffer_store_dwordx4 v[%d:%d], v4, s[8:11], 0 offen offset:%d" % (50 + 4 * j, 53 + 4 * j, 16 * j))
        e("s_branch L_end_%s" % name)
        lab("L_prep_next%d" % mi)
        base += counts[mi]
    e("s_sub_u32 s21, s20, %d" % ntr)
    srd_from_kernarg(4, KA_X, ACT)
    srd_from_kernarg(8, KA_WS, ACT, add=WS_XN)
    e("s_lshl_b32 s21, s21, 10")
    e("v_lshlrev_b32 v2, 4, v0")
    e("v_add_u32 v2, s21, v2")
    e("buffer_load_dwordx4 v[10:13], v2, s[4:7], 0 offen")
    e("s_waitcnt vmcnt(0)")
    ln_row_math(10, 20)
    e("buffer_store_dwordx4 v[20:23], v2, s[8:11], 0 offen")
    end_kernel(name, (total + 3) // 4, vgprs=80)


def gen_ln(name, src, dst1, dst2=None):
    begin_kernel(name)
    wave_task(20, S, name)
    srd_from_kernarg(4, KA_WS, ACT, add=src)
    srd_from_kernarg(8, KA_WS, ACT, add=dst1)
    if dst2 is not None:
        srd_from_kernarg(12, KA_WS, ACT, add=dst2)
    e("s_lshl_b32 s21, s20, 10")
    e("v_lshlrev_b32 v2, 4, v0")
    e("v_add_u32 v2, s21, v2")
    e("buffer_load_dwordx4 v[10:13], v2, s[4:7], 0 offen")
    e("s_waitcnt vmcnt(0)")
    ln_row_math(10, 20)
    e("buffer_store_dwordx4 v[20:23], v2, s[8:11], 0 offen")
    if dst2 is not None:
        ln_row_math(20, 24)
        e("buffer_store_dwordx4 v[24:27], v2, s[12:15], 0 offen")
    end_kernel(name, S // 4, vgprs=64)


def gelu_regs(v, t0, t1):
    e("v_mul_f32 v%d, v%d, v%d" % (t0, v, v))
    e("v_mov_b32 v%d, 0x3d372713" % t1)
    e("v_fma_f32 v%d, v%d, v%d, 1.0" % (t0, t0, t1))
    e("v_mul_f32 v%d, v%d, v%d" % (t0, t0, v))
    e("v_mul_f32 v%d, 0xc0135761, v%d" % (t0, t0))
    e("v_exp_f32 v%d, v%d" % (t0, t0))
    e("s_nop 0")
    e("v_add_f32 v%d, 1.0, v%d" % (t0, t0))
    e("v_rcp_f32 v%d, v%d" % (t0, t0))
    e("s_nop 0")
    e("v_mul_f32 v%d, v%d, v%d" % (v, v, t0))


def round_bf16(v, t):
    e("v_cvt_pk_bf16_f32 v%d, v%d, v%d" % (t, v, v))
    e("v_lshlrev_b32 v%d, 16, v%d" % (v, t))


def gen_gemm(name, K, N, xsrc, wt, epi, dst=None, res=None, res2=None, shift=False):
    nsteps = K // 16
    nnt = N // 32
    total = nnt * 64
    begin_kernel(name)
    wave_task(20, total, name)
    e("s_and_b32 s21, s20, 63")
    e("s_lshr_b32 s22, s20, 6")
    srd_from_kernarg(4, KA_WS, S * K * 2, add=xsrc)
    srd_from_kernarg(8, KA_WS, N * K * 2, add=wt)
    e("v_and_b32 v2, 31, v0")
    e("v_lshrrev_b32 v3, 5, v0")
    e("s_lshl_b32 s23, s21, 5")
    e("s_lshl_b32 s24, s22, 5")
    e("v_add_u32 v4, s23, v2")
    e("v_add_u32 v5, s24, v2")
    e("s_mov_b32 s25, %d" % (K * 2))
    e("v_mul_lo_u32 v6, v4, s25")
    e("v_mul_lo_u32 v7, v5, s25")
    e("v_lshlrev_b32 v8, 4, v3")
    e("v_add_u32 v6, v6, v8")
    e("v_add_u32 v7, v7, v8")
    if shift:
        for g, sh in enumerate((-1, 1, -2, 2)):
            e("v_add_u32 v%d, %d, v6" % (120 + g, (sh * K * 2) & 0xffffffff) if False else "")
            L.pop()
            e("s_mov_b32 s26, 0x%x" % ((sh * K * 2) & 0xffffffff))
            e("v_add_u32 v%d, s26, v6" % (120 + g))
    for r in range(16):
        e("v_mov_b32 v%d, 0" % (16 + r))
    R = 8
    PD = 6
    XB, WB = 40, 80

    def issue(s):
        slot = s % R
        xa = "v6" if not shift else "v%d" % (120 + (s * 16) // 128)
        e("buffer_load_dwordx4 v[%d:%d], %s, s[4:7], 0 offen offset:%d" % (XB + 4 * slot, XB + 4 * slot + 3, xa, s * 32))
        e("buffer_load_dwordx4 v[%d:%d], v7, s[8:11], 0 offen offset:%d" % (WB + 4 * slot, WB + 4 * slot + 3, s * 32))

    for s in range(min(PD, nsteps)):
        issue(s)
    for s in range(nsteps):
        if s + PD < nsteps:
            issue(s + PD)
            e("s_waitcnt vmcnt(%d)" % (2 * PD))
        else:
            e("s_waitcnt vmcnt(%d)" % (2 * (nsteps - 1 - s)))
        slot = s % R
        xr = "v[%d:%d]" % (XB + 4 * slot, XB + 4 * slot + 3)
        wr = "v[%d:%d]" % (WB + 4 * slot, WB + 4 * slot + 3)
        if epi == "qkv":
            pass
        e("v_mfma_f32_32x32x16_bf16 v[16:31], %s, %s, v[16:31]" % (wr, xr))
    e("s_nop 7")
    e("s_nop 7")
    e("v_lshlrev_b32 v9, 2, v3")
    e("v_add_u32 v9, s24, v9")
    if epi == "qkv":
        srd_from_kernarg(12, KA_WS, 3 * ACT, add=WS_Q)
        e("s_lshr_b32 s26, s24, 9")
        e("s_cmp_eq_u32 s26, 2")
        e("s_cbranch_scc1 L_%s_v" % name)
        e("s_cmp_eq_u32 s26, 0")
        e("s_cselect_b32 s27, 0x3eb8aa3b, 1.0")
        e("s_mul_i32 s26, s26, %d" % ACT)
        for i in range(4):
            e("v_add_u32 v10, %d, v9" % (8 * i))
            e("v_lshrrev_b32 v11, 4, v10")
            e("v_and_b32 v11, 31, v11")
            e("v_lshlrev_b32 v11, 11, v11")
            e("v_add_u32 v11, v11, v4")
            e("v_lshlrev_b32 v11, 4, v11")
            e("v_and_b32 v12, 15, v10")
            e("v_add_u32 v11, v11, v12")
            e("v_lshlrev_b32 v11, 1, v11")
            for j in range(4):
                round_bf16(16 + 4 * i + j, 13)
                e("v_mul_f32 v%d, s27, v%d" % (16 + 4 * i + j, 16 + 4 * i + j))
            e("v_cvt_pk_bf16_f32 v14, v%d, v%d" % (16 + 4 * i, 17 + 4 * i))
            e("v_cvt_pk_bf16_f32 v15, v%d, v%d" % (18 + 4 * i, 19 + 4 * i))
            e("buffer_store_dwordx2 v[14:15], v11, s[12:15], s26 offen")
        e("s_branch L_end_%s" % name)
        lab("L_%s_v" % name)
        e("s_mov_b32 s26, %d" % (2 * ACT))
        for i in range(4):
            for j in range(4):
                e("v_add_u32 v10, %d, v9" % (8 * i + j))
                e("v_and_b32 v10, 511, v10")
                e("v_lshlrev_b32 v10, 11, v10")
                e("v_add_u32 v10, v10, v4")
                e("v_lshlrev_b32 v10, 1, v10")
                e("v_cvt_pk_bf16_f32 v14, v%d, v%d" % (16 + 4 * i + j, 16 + 4 * i + j))
                e("buffer_store_short v14, v10, s[12:15], s26 offen")
    else:
        NO = N
        srd_from_kernarg(12, KA_OUT if epi == "final" else KA_WS, S * NO * 2, add=0 if epi == "final" else dst)
        if res is not None:
            srd_from_kernarg(28, KA_X if res == "x" else KA_WS, ACT, add=0 if res == "x" else res)
        if res2 is not None:
            srd_from_kernarg(32, KA_WS, ACT, add=res2)
        e("s_mov_b32 s25, %d" % (NO * 2))
        e("v_mul_lo_u32 v10, v4, s25")
        e("v_lshlrev_b32 v11, 1, v9")
        e("v_add_u32 v10, v10, v11")
        if res is not None:
            for i in range(4):
                e("buffer_load_dwordx2 v[%d:%d], v10, s[28:31], 0 offen offset:%d" % (40 + 2 * i, 41 + 2 * i, 16 * i))
        if res2 is not None:
            for i in range(4):
                e("buffer_load_dwordx2 v[%d:%d], v10, s[32:35], 0 offen offset:%d" % (50 + 2 * i, 51 + 2 * i, 16 * i))
        e("s_waitcnt vmcnt(0)")
        for i in range(4):
            for j in range(4):
                v = 16 + 4 * i + j
                round_bf16(v, 13)
                if epi == "gelu":
                    gelu_regs(v, 13, 14)
                if res is not None:
                    src = 40 + 2 * i + j // 2
                    if j % 2 == 0:
                        e("v_lshlrev_b32 v13, 16, v%d" % src)
                    else:
                        e("v_and_b32 v13, 0xffff0000, v%d" % src)
                    e("v_add_f32 v%d, v%d, v13" % (v, v))
                if res2 is not None:
                    round_bf16(v, 13)
                    src = 50 + 2 * i + j // 2
                    if j % 2 == 0:
                        e("v_lshlrev_b32 v13, 16, v%d" % src)
                    else:
                        e("v_and_b32 v13, 0xffff0000, v%d" % src)
                    e("v_add_f32 v%d, v%d, v13" % (v, v))
            e("v_cvt_pk_bf16_f32 v14, v%d, v%d" % (16 + 4 * i, 17 + 4 * i))
            e("v_cvt_pk_bf16_f32 v15, v%d, v%d" % (18 + 4 * i, 19 + 4 * i))
            e("buffer_store_dwordx2 v[14:15], v10, s[12:15], 0 offen offset:%d" % (16 * i))
    end_kernel(name, (total + 3) // 4, vgprs=128)


def gen_attn():
    name = "attn_kernel"
    total = H * 64
    begin_kernel(name)
    wave_task(20, total, name)
    e("s_lshr_b32 s21, s20, 6")
    e("s_and_b32 s22, s20, 63")
    srd_from_kernarg(4, KA_WS, 3 * ACT, add=WS_Q)
    srd_from_kernarg(8, KA_WS, ACT, add=WS_O)
    e("v_and_b32 v2, 31, v0")
    e("v_lshrrev_b32 v3, 5, v0")
    e("s_lshl_b32 s23, s21, 16")
    e("s_lshl_b32 s24, s22, 5")
    e("v_add_u32 v4, s24, v2")
    e("v_lshlrev_b32 v5, 5, v4")
    e("v_lshlrev_b32 v6, 4, v3")
    e("v_add_u32 v5, v5, v6")
    e("buffer_load_dwordx4 v[8:11], v5, s[4:7], s23 offen")
    e("v_lshlrev_b32 v7, 5, v2")
    e("v_add_u32 v7, v7, v6")
    e("s_add_u32 s25, s23, %d" % ACT)
    e("v_lshlrev_b32 v12, 12, v2")
    e("v_lshlrev_b32 v13, 3, v3")
    e("v_add_u32 v12, v12, v13")
    e("s_add_u32 s26, s23, %d" % (2 * ACT))
    e("v_mov_b32 v14, 0xff800000")
    e("s_waitcnt vmcnt(0)")
    e("s_mov_b32 s27, 0")
    lab("L_attn_p1")
    e("s_lshl_b32 s28, s27, 10")
    e("s_add_u32 s28, s28, s25")
    e("buffer_load_dwordx4 v[16:19], v7, s[4:7], s28 offen")
    e("s_waitcnt vmcnt(0)")
    e("v_mfma_f32_32x32x16_bf16 v[32:47], v[16:19], v[8:11], 0")
    e("s_nop 7")
    e("s_nop 7")
    for i in range(8):
        e("v_max3_f32 v14, v14, v%d, v%d" % (32 + 2 * i, 33 + 2 * i))
    e("s_add_u32 s27, s27, 1")
    e("s_cmp_lt_u32 s27, 64")
    e("s_cbranch_scc1 L_attn_p1")
    e("v_xor_b32 v15, 32, v0")
    e("v_lshlrev_b32 v15, 2, v15")
    e("ds_bpermute_b32 v20, v15, v14")
    e("s_waitcnt lgkmcnt(0)")
    e("v_max_f32 v14, v14, v20")
    for r in range(16):
        e("v_sub_f32 v%d, 0, v14" % (48 + r))
    for r in range(16):
        e("v_mov_b32 v%d, 0" % (64 + r))
    e("v_cmp_eq_u32 vcc, 16, v2")
    e("v_mov_b32 v20, 0")
    e("v_mov_b32 v21, 0x3f803f80")
    e("v_cndmask_b32 v20, v20, v21, vcc")
    for r in range(8):
        e("v_mov_b32 v%d, v20" % (80 + r))
    e("v_cmp_gt_u32 s[30:31], 16, v2")
    e("s_mov_b32 s27, 0")
    lab("L_attn_p2")
    e("s_lshl_b32 s28, s27, 10")
    e("s_add_u32 s28, s28, s25")
    e("buffer_load_dwordx4 v[16:19], v7, s[4:7], s28 offen")
    e("s_lshl_b32 s29, s27, 6")
    e("s_add_u32 s29, s29, s26")
    e("s_mov_b64 s[32:33], exec")
    e("s_mov_b64 exec, s[30:31]")
    for u in range(4):
        e("buffer_load_dwordx2 v[%d:%d], v12, s[4:7], s29 offen offset:%d" % (80 + 2 * u, 81 + 2 * u, 16 * u))
    e("s_mov_b64 exec, s[32:33]")
    e("s_waitcnt vmcnt(0)")
    e("v_mfma_f32_32x32x16_bf16 v[32:47], v[16:19], v[8:11], v[48:63]")
    e("s_nop 7")
    e("s_nop 7")
    for r in range(16):
        e("v_exp_f32 v%d, v%d" % (32 + r, 32 + r))
    e("s_nop 0")
    for r in range(8):
        e("v_cvt_pk_bf16_f32 v%d, v%d, v%d" % (88 + r, 32 + 2 * r, 33 + 2 * r))
    e("s_nop 1")
    e("v_mfma_f32_32x32x16_bf16 v[64:79], v[80:83], v[88:91], v[64:79]")
    e("v_mfma_f32_32x32x16_bf16 v[64:79], v[84:87], v[92:95], v[64:79]")
    e("s_add_u32 s27, s27, 1")
    e("s_cmp_lt_u32 s27, 64")
    e("s_cbranch_scc1 L_attn_p2")
    e("s_nop 7")
    e("s_nop 7")
    e("v_lshlrev_b32 v15, 2, v2")
    e("ds_bpermute_b32 v20, v15, v72")
    e("s_waitcnt lgkmcnt(0)")
    e("v_rcp_f32 v20, v20")
    e("s_nop 0")
    for r in range(8):
        e("v_mul_f32 v%d, v%d, v20" % (64 + r, 64 + r))
    e("v_lshlrev_b32 v21, 10, v4")
    e("v_lshlrev_b32 v22, 3, v3")
    e("v_add_u32 v21, v21, v22")
    e("s_lshl_b32 s28, s21, 5")
    for i in range(2):
        e("v_cvt_pk_bf16_f32 v22, v%d, v%d" % (64 + 4 * i, 65 + 4 * i))
        e("v_cvt_pk_bf16_f32 v23, v%d, v%d" % (66 + 4 * i, 67 + 4 * i))
        e("buffer_store_dwordx2 v[22:23], v21, s[8:11], s28 offen offset:%d" % (16 * i))
    end_kernel(name, total // 4, vgprs=128)


def main():
    order = []
    gen_prep(); order.append("prep_kernel")
    gen_gemm("qkv_kernel", 512, 1536, WS_XN, WS_WTQKV, "qkv")
    gen_attn()
    gen_gemm("wo_kernel", 512, 512, WS_O, WS_WTO, "res", dst=WS_H, res="x")
    gen_ln("ln2_kernel", WS_H, WS_LN2, WS_LNB)
    gen_gemm("w1_kernel", 512, 512, WS_LNB, WS_WT1, "gelu", dst=WS_HH)
    gen_gemm("w2_kernel", 512, 512, WS_HH, WS_WT2, "res", dst=WS_X1, res=WS_LN2, shift=True)
    gen_ln("ln3_kernel", WS_X1, WS_LNB)
    gen_gemm("w3_kernel", 512, 1376, WS_LNB, WS_WT3, "gelu", dst=WS_G3)
    gen_gemm("w4_kernel", 1376, 512, WS_G3, WS_WT4, "final", res=WS_X1, res2=WS_H)
    seq = ["prep_kernel", "qkv_kernel", "attn_kernel", "wo_kernel", "ln2_kernel", "w1_kernel",
           "w2_kernel", "ln3_kernel", "w3_kernel", "w4_kernel"]
    kd = {k[0]: k for k in kernels}
    hdr = []
    for k in seq:
        _, grid, vg, lds = kd[k]
        hdr.append("; @launch kernel=%s grid=(%d,1,1) block=(256,1,1) lds=%d" % (k, grid, lds))
    out = hdr + ['.amdgcn_target "amdgcn-amd-amdhsa--gfx950"', ".text"] + L + ['.section .rodata,"a"']
    for (k, grid, vg, lds) in kernels:
        out += [".p2align 6", ".amdhsa_kernel %s" % k,
                "  .amdhsa_next_free_vgpr %d" % vg, "  .amdhsa_next_free_sgpr 102",
                "  .amdhsa_accum_offset %d" % vg, "  .amdhsa_group_segment_fixed_size 0",
                "  .amdhsa_kernarg_size 88", "  .amdhsa_user_sgpr_count 2",
                "  .amdhsa_user_sgpr_kernarg_segment_ptr 1", "  .amdhsa_system_sgpr_workgroup_id_x 1",
                ".end_amdhsa_kernel"]
    open(OUT, "w").write("\n".join(out) + "\n")


main()
```

```python
import sys

NAME = "sequential_preLN__softmax_full_mha__mixer_s_mlp__prompt"
OUT = "cdna_kernels/%s.s" % NAME

S, D, F, H, DH = 2048, 512, 1376, 32, 16

KA_X, KA_WQKV, KA_WO, KA_BX, KA_W1, KA_W2, KA_W3, KA_W4, KA_OUT, KA_DBG, KA_WS = [8 * i for i in range(11)]

WS_WTQKV = 0x0
WS_WTO = 0x180000
WS_WT1 = 0x200000
WS_WT2 = 0x280000
WS_WT3 = 0x300000
WS_WT4 = 0x480000
WS_XN = 0x600000
WS_Q = 0x800000
WS_K = 0xA00000
WS_VT = 0xC00000
WS_O = 0x2000000
WS_H = 0x1000000
WS_LN2 = 0x1200000
WS_LNB = 0x1400000
WS_HH = 0x1600000
WS_X1 = 0x1800000
WS_G3 = 0x1A00000
ACT = S * D * 2

L = []


def e(s):
    L.append("    " + s)


def lab(s):
    L.append(s + ":")


kernels = []


def begin_kernel(name):
    L.append(".globl %s" % name)
    L.append(".p2align 8")
    L.append(".type %s,@function" % name)
    lab(name)


def end_kernel(name, grid, vgprs=256, lds=0):
    lab("L_end_" + name)
    e("s_endpgm")
    kernels.append((name, grid, vgprs, lds))


def srd_from_kernarg(sd, ka_off, nbytes, add=0):
    e("s_load_dwordx2 s[%d:%d], s[0:1], %d" % (sd, sd + 1, ka_off))
    e("s_waitcnt lgkmcnt(0)")
    if add:
        e("s_add_u32 s%d, s%d, 0x%x" % (sd, sd, add))
        e("s_addc_u32 s%d, s%d, 0" % (sd + 1, sd + 1))
    e("s_mov_b32 s%d, 0x%x" % (sd + 2, nbytes))
    e("s_mov_b32 s%d, 0x00020000" % (sd + 3))


def wave_task(sdst, nwaves_total, name):
    e("v_lshrrev_b32 v1, 6, v0")
    e("s_nop 1")
    e("v_readfirstlane_b32 s%d, v1" % sdst)
    e("s_lshl_b32 s3, s2, 2")
    e("s_add_u32 s%d, s%d, s3" % (sdst, sdst))
    e("s_cmp_ge_u32 s%d, %d" % (sdst, nwaves_total))
    e("s_cbranch_scc1 L_end_%s" % name)
    e("v_and_b32 v0, 63, v0")


def tile_off(vd, vt, vk, K, t0, t1):
    e("v_lshrrev_b32 v%d, 5, v%d" % (t0, vt))
    e("s_mov_b32 s36, %d" % (K // 16))
    e("v_mul_lo_u32 v%d, v%d, s36" % (t0, t0))
    e("v_lshrrev_b32 v%d, 4, v%d" % (t1, vk))
    e("v_add_u32 v%d, v%d, v%d" % (t0, t0, t1))
    e("v_lshlrev_b32 v%d, 10, v%d" % (vd, t0))
    e("v_and_b32 v%d, 31, v%d" % (t0, vt))
    e("v_lshlrev_b32 v%d, 4, v%d" % (t0, t0))
    e("v_add_u32 v%d, v%d, v%d" % (vd, vd, t0))
    e("v_lshrrev_b32 v%d, 3, v%d" % (t0, vk))
    e("v_and_b32 v%d, 1, v%d" % (t0, t0))
    e("v_lshlrev_b32 v%d, 9, v%d" % (t0, t0))
    e("v_add_u32 v%d, v%d, v%d" % (vd, vd, t0))
    e("v_and_b32 v%d, 7, v%d" % (t0, vk))
    e("v_lshlrev_b32 v%d, 1, v%d" % (t0, t0))
    e("v_add_u32 v%d, v%d, v%d" % (vd, vd, t0))


def wave_sum(v, vt, vaddr):
    for m in (32, 16, 8, 4, 2, 1):
        e("v_xor_b32 v%d, %d, v0" % (vaddr, m))
        e("v_lshlrev_b32 v%d, 2, v%d" % (vaddr, vaddr))
        e("ds_bpermute_b32 v%d, v%d, v%d" % (vt, vaddr, v))
        e("s_waitcnt lgkmcnt(0)")
        e("v_add_f32 v%d, v%d, v%d" % (v, v, vt))


def ln_row_math(vin, vout):
    for i in range(4):
        e("v_lshlrev_b32 v%d, 16, v%d" % (30 + 2 * i, vin + i))
        e("v_and_b32 v%d, 0xffff0000, v%d" % (31 + 2 * i, vin + i))
    e("v_add_f32 v40, v30, v31")
    for i in range(2, 8):
        e("v_add_f32 v40, v40, v%d" % (30 + i))
    wave_sum(40, 41, 42)
    e("v_mul_f32 v40, 0x3b000000, v40")
    for i in range(8):
        e("v_sub_f32 v%d, v%d, v40" % (30 + i, 30 + i))
    e("v_mul_f32 v43, v30, v30")
    for i in range(1, 8):
        e("v_fma_f32 v43, v%d, v%d, v43" % (30 + i, 30 + i))
    wave_sum(43, 41, 42)
    e("v_mov_b32 v44, 0x3727c5ac")
    e("v_fma_f32 v43, v43, 0x3b000000, v44") if False else None
    e("v_mul_f32 v43, 0x3b000000, v43")
    e("v_add_f32 v43, v43, v44")
    e("v_rsq_f32 v43, v43")
    e("s_nop 1")
    for i in range(8):
        e("v_mul_f32 v%d, v%d, v43" % (30 + i, 30 + i))
    for i in range(4):
        e("v_cvt_pk_bf16_f32 v%d, v%d, v%d" % (vout + i, 30 + 2 * i, 31 + 2 * i))


def gen_prep():
    name = "prep_kernel"
    mats = [
        (KA_WQKV, 512, 1536, WS_WTQKV),
        (KA_WO, 512, 512, WS_WTO),
        (KA_W1, 512, 512, WS_WT1),
        (KA_W2, 512, 512, WS_WT2),
        (KA_W3, 512, 1376, WS_WT3),
        (KA_W4, 1376, 512, WS_WT4),
    ]
    counts = [(K // 32) * ((N + 63) // 64) for (_, K, N, _) in mats]
    ntr = sum(counts)
    total = ntr + S
    begin_kernel(name)
    wave_task(20, total, name)
    base = 0
    for mi, (ka, K, N, dst) in enumerate(mats):
        nkt = K // 32
        e("s_cmp_ge_u32 s20, %d" % (base + counts[mi]))
        e("s_cbranch_scc1 L_prep_next%d" % mi)
        e("s_sub_u32 s21, s20, %d" % base)
        if nkt == 16:
            e("s_lshr_b32 s22, s21, 4")
            e("s_and_b32 s23, s21, 15")
        else:
            e("s_mov_b32 s24, 0x5f417d1")
            e("s_mul_hi_u32 s22, s21, s24")
            e("s_mul_i32 s24, s22, 43")
            e("s_sub_u32 s23, s21, s24")
        srd_from_kernarg(4, ka, K * N * 2)
        srd_from_kernarg(8, KA_WS, K * N * 2, add=dst)
        e("s_lshl_b32 s22, s22, 6")
        e("v_add_u32 v2, s22, v0")
        e("s_mov_b32 s25, %d" % N)
        e("v_cmp_gt_u32 vcc, s25, v2")
        e("s_and_saveexec_b64 s[26:27], vcc")
        e("s_cbranch_execz L_end_%s" % name)
        e("s_mul_i32 s24, s23, %d" % (32 * N * 2))
        e("v_lshlrev_b32 v3, 1, v2")
        e("v_add_u32 v3, s24, v3")
        for k in range(32):
            off = k * N * 2
            if off <= 4095:
                e("buffer_load_ushort v%d, v3, s[4:7], 0 offen offset:%d" % (10 + k, off))
            else:
                e("s_mov_b32 s28, %d" % off)
                e("buffer_load_ushort v%d, v3, s[4:7], s28 offen" % (10 + k))
        e("s_waitcnt vmcnt(0)")
        for k in range(16):
            e("v_lshl_or_b32 v%d, v%d, 16, v%d" % (50 + k, 11 + 2 * k, 10 + 2 * k))
        e("s_lshl_b32 s24, s23, 5")
        for j in range(4):
            e("v_mov_b32 v5, s24")
            e("v_add_u32 v5, %d, v5" % (8 * j))
            tile_off(4, 2, 5, K, 6, 7)
            e("buffer_store_dwordx4 v[%d:%d], v4, s[8:11], 0 offen" % (50 + 4 * j, 53 + 4 * j))
        e("s_branch L_end_%s" % name)
        lab("L_prep_next%d" % mi)
        base += counts[mi]
    e("s_sub_u32 s21, s20, %d" % ntr)
    srd_from_kernarg(4, KA_X, ACT)
    srd_from_kernarg(8, KA_WS, ACT, add=WS_XN)
    e("s_lshl_b32 s21, s21, 10")
    e("v_lshlrev_b32 v2, 4, v0")
    e("v_add_u32 v2, s21, v2")
    e("buffer_load_dwordx4 v[10:13], v2, s[4:7], 0 offen")
    e("s_waitcnt vmcnt(0)")
    ln_row_math(10, 20)
    e("s_lshr_b32 s21, s21, 10")
    e("v_mov_b32 v5, s21")
    e("v_lshlrev_b32 v6, 3, v0")
    tile_off(2, 5, 6, 512, 7, 8)
    e("buffer_store_dwordx4 v[20:23], v2, s[8:11], 0 offen")
    end_kernel(name, (total + 3) // 4, vgprs=80)


def gen_ln(name, src, dst1, dst2=None):
    begin_kernel(name)
    wave_task(20, S, name)
    srd_from_kernarg(4, KA_WS, ACT, add=src)
    srd_from_kernarg(8, KA_WS, ACT, add=dst1)
    if dst2 is not None:
        srd_from_kernarg(12, KA_WS, ACT, add=dst2)
    e("v_mov_b32 v5, s20")
    e("v_lshlrev_b32 v6, 3, v0")
    tile_off(2, 5, 6, 512, 7, 8)
    e("buffer_load_dwordx4 v[10:13], v2, s[4:7], 0 offen")
    e("s_waitcnt vmcnt(0)")
    ln_row_math(10, 20)
    e("buffer_store_dwordx4 v[20:23], v2, s[8:11], 0 offen")
    if dst2 is not None:
        ln_row_math(20, 24)
        e("buffer_store_dwordx4 v[24:27], v2, s[12:15], 0 offen")
    end_kernel(name, S // 4, vgprs=64)


def gelu_regs(v, t0, t1):
    e("v_mul_f32 v%d, v%d, v%d" % (t0, v, v))
    e("v_mov_b32 v%d, 0x3d372713" % t1)
    e("v_fma_f32 v%d, v%d, v%d, 1.0" % (t0, t0, t1))
    e("v_mul_f32 v%d, v%d, v%d" % (t0, t0, v))
    e("v_mul_f32 v%d, 0xc0135761, v%d" % (t0, t0))
    e("v_exp_f32 v%d, v%d" % (t0, t0))
    e("s_nop 0")
    e("v_add_f32 v%d, 1.0, v%d" % (t0, t0))
    e("v_rcp_f32 v%d, v%d" % (t0, t0))
    e("s_nop 0")
    e("v_mul_f32 v%d, v%d, v%d" % (v, v, t0))


def round_bf16(v, t):
    e("v_cvt_pk_bf16_f32 v%d, v%d, v%d" % (t, v, v))
    e("v_lshlrev_b32 v%d, 16, v%d" % (v, t))


def gen_gemm(name, K, N, xsrc, wt, epi, dst=None, res=None, res2=None, shift=False):
    nsteps = K // 16
    nnt = N // 32
    total = nnt * 64
    begin_kernel(name)
    wave_task(20, total, name)
    e("s_and_b32 s21, s20, 63")
    e("s_lshr_b32 s22, s20, 6")
    srd_from_kernarg(4, KA_WS, S * K * 2, add=xsrc)
    srd_from_kernarg(8, KA_WS, N * K * 2, add=wt)
    e("v_and_b32 v2, 31, v0")
    e("v_lshrrev_b32 v3, 5, v0")
    e("s_lshl_b32 s23, s21, 5")
    e("s_lshl_b32 s24, s22, 5")
    e("v_add_u32 v4, s23, v2")
    e("v_add_u32 v5, s24, v2")
    e("v_lshlrev_b32 v8, 4, v0")
    e("s_mul_i32 s25, s21, %d" % (K * 64))
    e("v_add_u32 v6, s25, v8")
    e("s_mul_i32 s25, s22, %d" % (K * 64))
    e("v_add_u32 v7, s25, v8")
    if shift:
        e("v_lshlrev_b32 v9, 3, v3")
        for g, sh in enumerate((-1, 1, -2, 2)):
            e("v_add_u32 v10, %d, v4" % sh)
            tile_off(120 + g, 10, 9, K, 11, 12)
            e("v_cmp_gt_u32 vcc, %d, v10" % S)
            e("v_mov_b32 v11, -1")
            e("v_cndmask_b32 v%d, v11, v%d, vcc" % (120 + g, 120 + g))
    for r in range(16):
        e("v_mov_b32 v%d, 0" % (16 + r))
    R = 8
    PD = 6
    XB, WB = 40, 80

    def issue(s):
        slot = s % R
        xa = "v6" if not shift else "v%d" % (120 + (s * 16) // 128)
        e("s_mov_b32 s27, %d" % (s * 1024))
        e("buffer_load_dwordx4 v[%d:%d], %s, s[4:7], s27 offen offset:%d" % (XB + 4 * slot, XB + 4 * slot + 3, xa, 0))
        e("buffer_load_dwordx4 v[%d:%d], v7, s[8:11], s27 offen" % (WB + 4 * slot, WB + 4 * slot + 3))

    for s in range(min(PD, nsteps)):
        issue(s)
    for s in range(nsteps):
        if s + PD < nsteps:
            issue(s + PD)
            e("s_waitcnt vmcnt(%d)" % (2 * PD))
        else:
            e("s_waitcnt vmcnt(%d)" % (2 * (nsteps - 1 - s)))
        slot = s % R
        xr = "v[%d:%d]" % (XB + 4 * slot, XB + 4 * slot + 3)
        wr = "v[%d:%d]" % (WB + 4 * slot, WB + 4 * slot + 3)
        if epi == "qkv":
            pass
        e("v_mfma_f32_32x32x16_bf16 v[16:31], %s, %s, v[16:31]" % (wr, xr))
    e("s_nop 7")
    e("s_nop 7")
    e("v_lshlrev_b32 v9, 2, v3")
    e("v_add_u32 v9, s24, v9")
    if epi == "qkv":
        srd_from_kernarg(12, KA_WS, 4 * ACT, add=WS_Q)
        e("s_lshr_b32 s26, s24, 9")
        e("s_cmp_eq_u32 s26, 2")
        e("s_cbranch_scc1 L_%s_v" % name)
        e("s_cmp_eq_u32 s26, 0")
        e("s_cselect_b32 s27, 0x3eb8aa3b, 1.0")
        e("s_mul_i32 s26, s26, %d" % ACT)
        for i in range(4):
            e("v_add_u32 v10, %d, v9" % (8 * i))
            e("v_lshrrev_b32 v11, 4, v10")
            e("v_and_b32 v11, 31, v11")
            e("v_lshlrev_b32 v11, 11, v11")
            e("v_add_u32 v11, v11, v4")
            e("v_lshlrev_b32 v11, 4, v11")
            e("v_and_b32 v12, 15, v10")
            e("v_add_u32 v11, v11, v12")
            e("v_lshlrev_b32 v11, 1, v11")
            for j in range(4):
                round_bf16(16 + 4 * i + j, 13)
                e("v_mul_f32 v%d, s27, v%d" % (16 + 4 * i + j, 16 + 4 * i + j))
            e("v_cvt_pk_bf16_f32 v14, v%d, v%d" % (16 + 4 * i, 17 + 4 * i))
            e("v_cvt_pk_bf16_f32 v15, v%d, v%d" % (18 + 4 * i, 19 + 4 * i))
            e("buffer_store_dwordx2 v[14:15], v11, s[12:15], s26 offen")
        e("s_branch L_end_%s" % name)
        lab("L_%s_v" % name)
        e("s_mov_b32 s26, %d" % (2 * ACT))
        for i in range(4):
            for j in range(4):
                e("v_add_u32 v10, %d, v9" % (8 * i + j))
                e("v_lshrrev_b32 v11, 4, v10")
                e("v_and_b32 v11, 31, v11")
                e("v_lshlrev_b32 v11, 7, v11")
                e("v_lshrrev_b32 v12, 4, v4")
                e("v_add_u32 v11, v11, v12")
                e("v_lshlrev_b32 v11, 10, v11")
                e("v_and_b32 v10, 15, v10")
                e("v_lshlrev_b32 v10, 4, v10")
                e("v_add_u32 v11, v11, v10")
                e("v_lshrrev_b32 v12, 2, v4")
                e("v_and_b32 v12, 1, v12")
                e("v_lshlrev_b32 v12, 9, v12")
                e("v_add_u32 v11, v11, v12")
                e("v_and_b32 v12, 3, v4")
                e("v_lshlrev_b32 v12, 1, v12")
                e("v_add_u32 v11, v11, v12")
                e("v_lshrrev_b32 v12, 3, v4")
                e("v_and_b32 v12, 1, v12")
                e("v_lshlrev_b32 v12, 3, v12")
                e("v_add_u32 v10, v11, v12")
                e("v_cvt_pk_bf16_f32 v14, v%d, v%d" % (16 + 4 * i + j, 16 + 4 * i + j))
                e("buffer_store_short v14, v10, s[12:15], s26 offen")
    else:
        NO = N
        srd_from_kernarg(12, KA_OUT if epi == "final" else KA_WS, S * NO * 2, add=0 if epi == "final" else dst)
        if res is not None:
            srd_from_kernarg(28, KA_X if res == "x" else KA_WS, ACT, add=0 if res == "x" else res)
        if res2 is not None:
            srd_from_kernarg(32, KA_WS, ACT, add=res2)
        e("s_mov_b32 s25, %d" % (NO * 2))
        e("v_mul_lo_u32 v10, v4, s25")
        e("v_lshlrev_b32 v11, 1, v9")
        e("v_add_u32 v10, v10, v11")
        for i in range(4):
            e("v_add_u32 v11, %d, v9" % (8 * i))
            tile_off(60 + i, 4, 11, NO, 12, 13)
            e("v_add_u32 v%d, %d, v10" % (64 + i, 16 * i))
        if res is not None:
            for i in range(4):
                e("buffer_load_dwordx2 v[%d:%d], v%d, s[28:31], 0 offen" % (40 + 2 * i, 41 + 2 * i, (64 if res == "x" else 60) + i))
        if res2 is not None:
            for i in range(4):
                e("buffer_load_dwordx2 v[%d:%d], v%d, s[32:35], 0 offen" % (50 + 2 * i, 51 + 2 * i, 60 + i))
        e("s_waitcnt vmcnt(0)")
        for i in range(4):
            for j in range(4):
                v = 16 + 4 * i + j
                round_bf16(v, 13)
                if epi == "gelu":
                    gelu_regs(v, 13, 14)
                if res is not None:
                    src = 40 + 2 * i + j // 2
                    if j % 2 == 0:
                        e("v_lshlrev_b32 v13, 16, v%d" % src)
                    else:
                        e("v_and_b32 v13, 0xffff0000, v%d" % src)
                    e("v_add_f32 v%d, v%d, v13" % (v, v))
                if res2 is not None:
                    round_bf16(v, 13)
                    src = 50 + 2 * i + j // 2
                    if j % 2 == 0:
                        e("v_lshlrev_b32 v13, 16, v%d" % src)
                    else:
                        e("v_and_b32 v13, 0xffff0000, v%d" % src)
                    e("v_add_f32 v%d, v%d, v13" % (v, v))
            e("v_cvt_pk_bf16_f32 v14, v%d, v%d" % (16 + 4 * i, 17 + 4 * i))
            e("v_cvt_pk_bf16_f32 v15, v%d, v%d" % (18 + 4 * i, 19 + 4 * i))
            e("buffer_store_dwordx2 v[14:15], v%d, s[12:15], 0 offen" % ((64 if epi == "final" else 60) + i))
    end_kernel(name, (total + 3) // 4, vgprs=128)


def gen_attn():
    name = "attn_kernel"
    total = H * 64
    begin_kernel(name)
    wave_task(20, total, name)
    e("s_lshr_b32 s21, s20, 6")
    e("s_and_b32 s22, s20, 63")
    srd_from_kernarg(4, KA_WS, 4 * ACT, add=WS_Q)
    srd_from_kernarg(8, KA_WS, ACT, add=WS_O)
    e("v_and_b32 v2, 31, v0")
    e("v_lshrrev_b32 v3, 5, v0")
    e("s_lshl_b32 s23, s21, 16")
    e("s_lshl_b32 s24, s22, 5")
    e("v_add_u32 v4, s24, v2")
    e("v_lshlrev_b32 v5, 5, v4")
    e("v_lshlrev_b32 v6, 4, v3")
    e("v_add_u32 v5, v5, v6")
    e("buffer_load_dwordx4 v[8:11], v5, s[4:7], s23 offen")
    e("v_lshlrev_b32 v7, 5, v2")
    e("v_add_u32 v7, v7, v6")
    e("s_add_u32 s25, s23, %d" % ACT)
    e("v_lshlrev_b32 v12, 12, v2")
    e("v_lshlrev_b32 v13, 3, v3")
    e("v_add_u32 v12, v12, v13")
    e("s_add_u32 s26, s23, %d" % (2 * ACT))
    e("v_mov_b32 v14, 0xff800000")
    e("s_waitcnt vmcnt(0)")
    KB = [(16, 20), (24, 28)]
    def kload(pair, blk_s):
        for t in range(2):
            e("s_add_u32 s28, %s, %d" % (blk_s, t))
            e("s_lshl_b32 s28, s28, 10")
            e("s_add_u32 s28, s28, s25")
            e("buffer_load_dwordx4 v[%d:%d], v7, s[4:7], s28 offen" % (pair[t], pair[t] + 3))
    e("s_mov_b32 s27, 0")
    kload(KB[0], "s27")
    lab("L_attn_p1")
    for ph in range(2):
        cur, nxt = KB[ph], KB[1 - ph]
        e("s_add_u32 s27, s27, 2")
        kload(nxt, "s27")
        e("s_waitcnt vmcnt(2)")
        e("v_mfma_f32_32x32x16_bf16 v[32:47], v[%d:%d], v[8:11], 0" % (cur[0], cur[0] + 3))
        e("v_mfma_f32_32x32x16_bf16 v[96:111], v[%d:%d], v[8:11], 0" % (cur[1], cur[1] + 3))
        e("s_nop 7")
        e("s_nop 3")
        for i in range(8):
            e("v_max3_f32 v14, v14, v%d, v%d" % (32 + 2 * i, 33 + 2 * i))
        e("s_nop 3")
        for i in range(8):
            e("v_max3_f32 v14, v14, v%d, v%d" % (96 + 2 * i, 97 + 2 * i))
    e("s_cmp_lt_u32 s27, 64")
    e("s_cbranch_scc1 L_attn_p1")
    e("s_waitcnt vmcnt(0)")
    e("v_xor_b32 v15, 32, v0")
    e("v_lshlrev_b32 v15, 2, v15")
    e("ds_bpermute_b32 v20, v15, v14")
    e("s_waitcnt lgkmcnt(0)")
    e("v_max_f32 v14, v14, v20")
    for r in range(16):
        e("v_sub_f32 v%d, 0, v14" % (48 + r))
    for r in range(16):
        e("v_mov_b32 v%d, 0" % (64 + r))
    e("v_cmp_eq_u32 vcc, 16, v2")
    e("v_mov_b32 v20, 0")
    e("v_mov_b32 v21, 0x3f803f80")
    e("v_cndmask_b32 v20, v20, v21, vcc")
    VB = [128, 160]
    for vb in VB:
        for r in range(16):
            e("v_mov_b32 v%d, v20" % (vb + r))
    e("v_cmp_gt_u32 s[30:31], 16, v2")
    e("v_lshlrev_b32 v12, 4, v0")
    e("s_lshl_b32 s26, s21, 17")
    e("s_add_u32 s26, s26, %d" % (2 * ACT))
    def vload(vb, blk_s):
        e("s_lshl_b32 s29, %s, 11" % blk_s)
        e("s_add_u32 s29, s29, s26")
        e("s_mov_b64 s[32:33], exec")
        e("s_mov_b64 exec, s[30:31]")
        for u in range(4):
            e("buffer_load_dwordx4 v[%d:%d], v12, s[4:7], s29 offen offset:%d" % (vb + 4 * u, vb + 4 * u + 3, 1024 * u))
        e("s_mov_b64 exec, s[32:33]")
    e("s_mov_b32 s27, 0")
    kload(KB[0], "s27")
    vload(VB[0], "s27")
    lab("L_attn_p2")
    for ph in range(2):
        cur, nxt = KB[ph], KB[1 - ph]
        e("s_add_u32 s27, s27, 2")
        kload(nxt, "s27")
        vload(VB[1 - ph], "s27")
        e("s_waitcnt vmcnt(6)")
        e("v_mfma_f32_32x32x16_bf16 v[32:47], v[%d:%d], v[8:11], v[48:63]" % (cur[0], cur[0] + 3))
        e("v_mfma_f32_32x32x16_bf16 v[96:111], v[%d:%d], v[8:11], v[48:63]" % (cur[1], cur[1] + 3))
        e("s_nop 7")
        e("s_nop 3")
        for t, sb in enumerate((32, 96)):
            for r in range(16):
                e("v_exp_f32 v%d, v%d" % (sb + r, sb + r))
            e("s_nop 0")
            pb = 112 + 8 * t
            for r in range(8):
                e("v_cvt_pk_bf16_f32 v%d, v%d, v%d" % (pb + r, sb + 2 * r, sb + 2 * r + 1))
            e("s_nop 1")
            vb = VB[ph] + 8 * t
            e("v_mfma_f32_32x32x16_bf16 v[64:79], v[%d:%d], v[%d:%d], v[64:79]" % (vb, vb + 3, pb, pb + 3))
            e("v_mfma_f32_32x32x16_bf16 v[64:79], v[%d:%d], v[%d:%d], v[64:79]" % (vb + 4, vb + 7, pb + 4, pb + 7))
    e("s_cmp_lt_u32 s27, 64")
    e("s_cbranch_scc1 L_attn_p2")
    e("s_waitcnt vmcnt(0)")
    e("s_nop 7")
    e("s_nop 7")
    e("v_lshlrev_b32 v15, 2, v2")
    e("ds_bpermute_b32 v20, v15, v72")
    e("s_waitcnt lgkmcnt(0)")
    e("v_rcp_f32 v20, v20")
    e("s_nop 0")
    for r in range(8):
        e("v_mul_f32 v%d, v%d, v20" % (64 + r, 64 + r))
    e("s_lshl_b32 s28, s21, 4")
    for i in range(2):
        e("v_lshlrev_b32 v24, 2, v3")
        e("v_add_u32 v24, s28, v24")
        e("v_add_u32 v24, %d, v24" % (8 * i))
        tile_off(21, 4, 24, 512, 25, 26)
        e("v_cvt_pk_bf16_f32 v22, v%d, v%d" % (64 + 4 * i, 65 + 4 * i))
        e("v_cvt_pk_bf16_f32 v23, v%d, v%d" % (66 + 4 * i, 67 + 4 * i))
        e("buffer_store_dwordx2 v[22:23], v21, s[8:11], 0 offen")
    end_kernel(name, total // 4, vgprs=192)


def main():
    order = []
    gen_prep(); order.append("prep_kernel")
    gen_gemm("qkv_kernel", 512, 1536, WS_XN, WS_WTQKV, "qkv")
    gen_attn()
    gen_gemm("wo_kernel", 512, 512, WS_O, WS_WTO, "res", dst=WS_H, res="x")
    gen_ln("ln2_kernel", WS_H, WS_LN2, WS_LNB)
    gen_gemm("w1_kernel", 512, 512, WS_LNB, WS_WT1, "gelu", dst=WS_HH)
    gen_gemm("w2_kernel", 512, 512, WS_HH, WS_WT2, "res", dst=WS_X1, res=WS_LN2, shift=True)
    gen_ln("ln3_kernel", WS_X1, WS_LNB)
    gen_gemm("w3_kernel", 512, 1376, WS_LNB, WS_WT3, "gelu", dst=WS_G3)
    gen_gemm("w4_kernel", 1376, 512, WS_G3, WS_WT4, "final", res=WS_X1, res2=WS_H)
    seq = ["prep_kernel", "qkv_kernel", "attn_kernel", "wo_kernel", "ln2_kernel", "w1_kernel",
           "w2_kernel", "ln3_kernel", "w3_kernel", "w4_kernel"]
    kd = {k[0]: k for k in kernels}
    hdr = []
    for k in seq:
        _, grid, vg, lds = kd[k]
        hdr.append("; @launch kernel=%s grid=(%d,1,1) block=(256,1,1) lds=%d" % (k, grid, lds))
    out = hdr + ['.amdgcn_target "amdgcn-amd-amdhsa--gfx950"', ".text"] + L + ['.section .rodata,"a"']
    for (k, grid, vg, lds) in kernels:
        out += [".p2align 6", ".amdhsa_kernel %s" % k,
                "  .amdhsa_next_free_vgpr %d" % vg, "  .amdhsa_next_free_sgpr 102",
                "  .amdhsa_accum_offset %d" % vg, "  .amdhsa_group_segment_fixed_size 0",
                "  .amdhsa_kernarg_size 88", "  .amdhsa_user_sgpr_count 2",
                "  .amdhsa_user_sgpr_kernarg_segment_ptr 1", "  .amdhsa_system_sgpr_workgroup_id_x 1",
                ".end_amdhsa_kernel"]
    open(OUT, "w").write("\n".join(out) + "\n")


main()
```

```python
import sys

NAME = "sequential_preLN__softmax_full_mha__mixer_s_mlp__prompt"
OUT = "cdna_kernels/%s.s" % NAME

S, D, F, H, DH = 2048, 512, 1376, 32, 16

KA_X, KA_WQKV, KA_WO, KA_BX, KA_W1, KA_W2, KA_W3, KA_W4, KA_OUT, KA_DBG, KA_WS = [8 * i for i in range(11)]

WS_WTQKV = 0x0
WS_WTO = 0x180000
WS_WT1 = 0x200000
WS_WT2 = 0x280000
WS_WT3 = 0x300000
WS_WT4 = 0x480000
WS_XN = 0x600000
WS_Q = 0x800000
WS_K = 0xA00000
WS_VT = 0xC00000
WS_O = 0x2000000
WS_H = 0x1000000
WS_LN2 = 0x1200000
WS_LNB = 0x1400000
WS_HH = 0x1600000
WS_X1 = 0x1800000
WS_G3 = 0x1A00000
ACT = S * D * 2

L = []


def e(s):
    L.append("    " + s)


def lab(s):
    L.append(s + ":")


kernels = []


def begin_kernel(name):
    L.append(".globl %s" % name)
    L.append(".p2align 8")
    L.append(".type %s,@function" % name)
    lab(name)
    e("s_load_dwordx16 s[64:79], s[0:1], 0")
    e("s_load_dwordx4 s[80:83], s[0:1], 64")
    e("s_load_dwordx2 s[84:85], s[0:1], 80")


def end_kernel(name, grid, vgprs=256, lds=0):
    lab("L_end_" + name)
    e("s_endpgm")
    kernels.append((name, grid, vgprs, lds))


def srd_from_kernarg(sd, ka_off, nbytes, add=0):
    e("s_waitcnt lgkmcnt(0)")
    e("s_add_u32 s%d, s%d, 0x%x" % (sd, 64 + ka_off // 4, add))
    e("s_addc_u32 s%d, s%d, 0" % (sd + 1, 65 + ka_off // 4))
    e("s_mov_b32 s%d, 0x%x" % (sd + 2, nbytes))
    e("s_mov_b32 s%d, 0x00020000" % (sd + 3))


def wave_task(sdst, nwaves_total, name):
    e("v_lshrrev_b32 v1, 6, v0")
    e("s_nop 1")
    e("v_readfirstlane_b32 s%d, v1" % sdst)
    e("s_lshl_b32 s3, s2, 2")
    e("s_add_u32 s%d, s%d, s3" % (sdst, sdst))
    e("s_cmp_ge_u32 s%d, %d" % (sdst, nwaves_total))
    e("s_cbranch_scc1 L_end_%s" % name)
    e("v_and_b32 v0, 63, v0")


def tile_off(vd, vt, vk, K, t0, t1):
    e("v_lshrrev_b32 v%d, 5, v%d" % (t0, vt))
    e("s_mov_b32 s36, %d" % (K // 16))
    e("v_mul_lo_u32 v%d, v%d, s36" % (t0, t0))
    e("v_lshrrev_b32 v%d, 4, v%d" % (t1, vk))
    e("v_add_u32 v%d, v%d, v%d" % (t0, t0, t1))
    e("v_lshlrev_b32 v%d, 10, v%d" % (vd, t0))
    e("v_and_b32 v%d, 31, v%d" % (t0, vt))
    e("v_lshlrev_b32 v%d, 4, v%d" % (t0, t0))
    e("v_add_u32 v%d, v%d, v%d" % (vd, vd, t0))
    e("v_lshrrev_b32 v%d, 3, v%d" % (t0, vk))
    e("v_and_b32 v%d, 1, v%d" % (t0, t0))
    e("v_lshlrev_b32 v%d, 9, v%d" % (t0, t0))
    e("v_add_u32 v%d, v%d, v%d" % (vd, vd, t0))
    e("v_and_b32 v%d, 7, v%d" % (t0, vk))
    e("v_lshlrev_b32 v%d, 1, v%d" % (t0, t0))
    e("v_add_u32 v%d, v%d, v%d" % (vd, vd, t0))


def wave_sum(v, vt, vaddr):
    for m in (32, 16, 8, 4, 2, 1):
        e("v_xor_b32 v%d, %d, v0" % (vaddr, m))
        e("v_lshlrev_b32 v%d, 2, v%d" % (vaddr, vaddr))
        e("ds_bpermute_b32 v%d, v%d, v%d" % (vt, vaddr, v))
        e("s_waitcnt lgkmcnt(0)")
        e("v_add_f32 v%d, v%d, v%d" % (v, v, vt))


def ln_row_math(vin, vout):
    for i in range(4):
        e("v_lshlrev_b32 v%d, 16, v%d" % (30 + 2 * i, vin + i))
        e("v_and_b32 v%d, 0xffff0000, v%d" % (31 + 2 * i, vin + i))
    e("v_add_f32 v40, v30, v31")
    for i in range(2, 8):
        e("v_add_f32 v40, v40, v%d" % (30 + i))
    wave_sum(40, 41, 42)
    e("v_mul_f32 v40, 0x3b000000, v40")
    for i in range(8):
        e("v_sub_f32 v%d, v%d, v40" % (30 + i, 30 + i))
    e("v_mul_f32 v43, v30, v30")
    for i in range(1, 8):
        e("v_fma_f32 v43, v%d, v%d, v43" % (30 + i, 30 + i))
    wave_sum(43, 41, 42)
    e("v_mov_b32 v44, 0x3727c5ac")
    e("v_fma_f32 v43, v43, 0x3b000000, v44") if False else None
    e("v_mul_f32 v43, 0x3b000000, v43")
    e("v_add_f32 v43, v43, v44")
    e("v_rsq_f32 v43, v43")
    e("s_nop 1")
    for i in range(8):
        e("v_mul_f32 v%d, v%d, v43" % (30 + i, 30 + i))
    for i in range(4):
        e("v_cvt_pk_bf16_f32 v%d, v%d, v%d" % (vout + i, 30 + 2 * i, 31 + 2 * i))


def gen_prep():
    name = "prep_kernel"
    mats = [
        (KA_WQKV, 512, 1536, WS_WTQKV),
        (KA_WO, 512, 512, WS_WTO),
        (KA_W1, 512, 512, WS_WT1),
        (KA_W2, 512, 512, WS_WT2),
        (KA_W3, 512, 1376, WS_WT3),
        (KA_W4, 1376, 512, WS_WT4),
    ]
    counts = [(K // 32) * ((N + 63) // 64) for (_, K, N, _) in mats]
    ntr = sum(counts)
    total = ntr + S
    begin_kernel(name)
    wave_task(20, total, name)
    base = 0
    for mi, (ka, K, N, dst) in enumerate(mats):
        nkt = K // 32
        e("s_cmp_ge_u32 s20, %d" % (base + counts[mi]))
        e("s_cbranch_scc1 L_prep_next%d" % mi)
        e("s_sub_u32 s21, s20, %d" % base)
        if nkt == 16:
            e("s_lshr_b32 s22, s21, 4")
            e("s_and_b32 s23, s21, 15")
        else:
            e("s_mov_b32 s24, 0x5f417d1")
            e("s_mul_hi_u32 s22, s21, s24")
            e("s_mul_i32 s24, s22, 43")
            e("s_sub_u32 s23, s21, s24")
        srd_from_kernarg(4, ka, K * N * 2)
        srd_from_kernarg(8, KA_WS, K * N * 2, add=dst)
        e("s_lshl_b32 s22, s22, 6")
        e("v_add_u32 v2, s22, v0")
        e("s_mov_b32 s25, %d" % N)
        e("v_cmp_gt_u32 vcc, s25, v2")
        e("s_and_saveexec_b64 s[26:27], vcc")
        e("s_cbranch_execz L_end_%s" % name)
        e("s_mul_i32 s24, s23, %d" % (32 * N * 2))
        e("v_lshlrev_b32 v3, 1, v2")
        e("v_add_u32 v3, s24, v3")
        for k in range(32):
            off = k * N * 2
            if off <= 4095:
                e("buffer_load_ushort v%d, v3, s[4:7], 0 offen offset:%d" % (10 + k, off))
            else:
                e("s_mov_b32 s28, %d" % off)
                e("buffer_load_ushort v%d, v3, s[4:7], s28 offen" % (10 + k))
        e("s_waitcnt vmcnt(0)")
        for k in range(16):
            e("v_lshl_or_b32 v%d, v%d, 16, v%d" % (50 + k, 11 + 2 * k, 10 + 2 * k))
        e("s_lshl_b32 s24, s23, 5")
        for j in range(4):
            e("v_mov_b32 v5, s24")
            e("v_add_u32 v5, %d, v5" % (8 * j))
            tile_off(4, 2, 5, K, 6, 7)
            e("buffer_store_dwordx4 v[%d:%d], v4, s[8:11], 0 offen" % (50 + 4 * j, 53 + 4 * j))
        e("s_branch L_end_%s" % name)
        lab("L_prep_next%d" % mi)
        base += counts[mi]
    e("s_sub_u32 s21, s20, %d" % ntr)
    srd_from_kernarg(4, KA_X, ACT)
    srd_from_kernarg(8, KA_WS, ACT, add=WS_XN)
    e("s_lshl_b32 s21, s21, 10")
    e("v_lshlrev_b32 v2, 4, v0")
    e("v_add_u32 v2, s21, v2")
    e("buffer_load_dwordx4 v[10:13], v2, s[4:7], 0 offen")
    e("s_waitcnt vmcnt(0)")
    ln_row_math(10, 20)
    e("s_lshr_b32 s21, s21, 10")
    e("v_mov_b32 v5, s21")
    e("v_lshlrev_b32 v6, 3, v0")
    tile_off(2, 5, 6, 512, 7, 8)
    e("buffer_store_dwordx4 v[20:23], v2, s[8:11], 0 offen")
    end_kernel(name, (total + 3) // 4, vgprs=80)


def gen_ln(name, src, dst1, dst2=None):
    begin_kernel(name)
    wave_task(20, S, name)
    srd_from_kernarg(4, KA_WS, ACT, add=src)
    srd_from_kernarg(8, KA_WS, ACT, add=dst1)
    if dst2 is not None:
        srd_from_kernarg(12, KA_WS, ACT, add=dst2)
    e("v_mov_b32 v5, s20")
    e("v_lshlrev_b32 v6, 3, v0")
    tile_off(2, 5, 6, 512, 7, 8)
    e("buffer_load_dwordx4 v[10:13], v2, s[4:7], 0 offen")
    e("s_waitcnt vmcnt(0)")
    ln_row_math(10, 20)
    e("buffer_store_dwordx4 v[20:23], v2, s[8:11], 0 offen")
    if dst2 is not None:
        ln_row_math(20, 24)
        e("buffer_store_dwordx4 v[24:27], v2, s[12:15], 0 offen")
    end_kernel(name, S // 4, vgprs=64)


def gelu_regs(v, t0, t1):
    e("v_mul_f32 v%d, v%d, v%d" % (t0, v, v))
    e("v_mov_b32 v%d, 0x3d372713" % t1)
    e("v_fma_f32 v%d, v%d, v%d, 1.0" % (t0, t0, t1))
    e("v_mul_f32 v%d, v%d, v%d" % (t0, t0, v))
    e("v_mul_f32 v%d, 0xc0135761, v%d" % (t0, t0))
    e("v_exp_f32 v%d, v%d" % (t0, t0))
    e("s_nop 0")
    e("v_add_f32 v%d, 1.0, v%d" % (t0, t0))
    e("v_rcp_f32 v%d, v%d" % (t0, t0))
    e("s_nop 0")
    e("v_mul_f32 v%d, v%d, v%d" % (v, v, t0))


def round_bf16(v, t):
    e("v_cvt_pk_bf16_f32 v%d, v%d, v%d" % (t, v, v))
    e("v_lshlrev_b32 v%d, 16, v%d" % (v, t))


def gen_gemm(name, K, N, xsrc, wt, epi, dst=None, res=None, res2=None, shift=False, TM=2, TN=2):
    nsteps = K // 16
    nnt = (N // 32 + TN - 1) // TN
    nmt = 64 // TM
    total = nnt * nmt
    begin_kernel(name)
    wave_task(20, total, name)
    e("s_and_b32 s21, s20, %d" % (nmt - 1))
    e("s_lshr_b32 s22, s20, %d" % (nmt.bit_length() - 1))
    srd_from_kernarg(4, KA_WS, S * K * 2, add=xsrc)
    srd_from_kernarg(8, KA_WS, N * K * 2, add=wt)
    e("v_and_b32 v2, 31, v0")
    e("v_lshrrev_b32 v3, 5, v0")
    e("v_lshlrev_b32 v8, 4, v0")
    for tm in range(TM):
        e("s_mul_i32 s25, s21, %d" % (K * 64 * TM))
        e("s_add_u32 s25, s25, %d" % (K * 64 * tm))
        e("v_add_u32 v%d, s25, v8" % (232 + tm))
    for tn in range(TN):
        e("s_mul_i32 s25, s22, %d" % (K * 64 * TN))
        e("s_add_u32 s25, s25, %d" % (K * 64 * tn))
        e("v_add_u32 v%d, s25, v8" % (234 + tn))
    if shift:
        e("v_lshlrev_b32 v9, 3, v3")
        for tm in range(TM):
            e("s_lshl_b32 s23, s21, %d" % (5 + TM - 1))
            e("v_add_u32 v4, s23, v2")
            for g, sh in enumerate((-1, 1, -2, 2)):
                e("v_add_u32 v10, %d, v4" % (sh + 32 * tm))
                tile_off(240 + 4 * tm + g, 10, 9, K, 11, 12)
                e("v_cmp_gt_u32 vcc, %d, v10" % S)
                e("v_mov_b32 v11, -1")
                e("v_cndmask_b32 v%d, v11, v%d, vcc" % (240 + 4 * tm + g, 240 + 4 * tm + g))
    AB = 160
    for r in range(16 * TM * TN):
        e("v_mov_b32 v%d, 0" % (AB + r))
    R = 8
    PD = 7
    XB, WB = 32, 96
    NL = TM + TN

    def issue(s):
        slot = s % R
        e("s_mov_b32 s27, %d" % (s * 1024))
        for tm in range(TM):
            xa = "v%d" % (232 + tm) if not shift else "v%d" % (240 + 4 * tm + (s * 16) // 128)
            r0 = XB + 8 * slot + 4 * tm
            e("buffer_load_dwordx4 v[%d:%d], %s, s[4:7], s27 offen" % (r0, r0 + 3, xa))
        for tn in range(TN):
            r0 = WB + 8 * slot + 4 * tn
            e("buffer_load_dwordx4 v[%d:%d], v%d, s[8:11], s27 offen" % (r0, r0 + 3, 234 + tn))

    for s in range(min(PD, nsteps)):
        issue(s)
    for s in range(nsteps):
        if s + PD < nsteps:
            issue(s + PD)
            e("s_waitcnt vmcnt(%d)" % (NL * PD))
        else:
            e("s_waitcnt vmcnt(%d)" % (NL * (nsteps - 1 - s)))
        slot = s % R
        for tm in range(TM):
            for tn in range(TN):
                x0 = XB + 8 * slot + 4 * tm
                w0 = WB + 8 * slot + 4 * tn
                ac = AB + 16 * (tm * TN + tn)
                e("v_mfma_f32_32x32x16_bf16 v[%d:%d], v[%d:%d], v[%d:%d], v[%d:%d]" % (ac, ac + 15, w0, w0 + 3, x0, x0 + 3, ac, ac + 15))
    e("s_nop 7")
    e("s_nop 7")
    for tm in range(TM):
        for tn in range(TN):
            sfx = "%d%d" % (tm, tn)
            ac = AB + 16 * (tm * TN + tn)
            e("s_lshl_b32 s23, s21, %d" % (5 + TM - 1))
            e("s_add_u32 s23, s23, %d" % (32 * tm))
            e("s_lshl_b32 s24, s22, %d" % (5 + TN - 1))
            e("s_add_u32 s24, s24, %d" % (32 * tn))
            e("s_cmp_ge_u32 s24, %d" % N)
            e("s_cbranch_scc1 L_%s_skip%s" % (name, sfx))
            e("v_add_u32 v4, s23, v2")
            for r in range(16):
                e("v_mov_b32 v%d, v%d" % (16 + r, ac + r))
            gemm_epi(name, sfx, N, epi, dst, res, res2)
            lab("L_%s_skip%s" % (name, sfx))
    end_kernel(name, (total + 3) // 4, vgprs=256)


def gemm_epi(name, sfx, N, epi, dst, res, res2):
    e("v_lshlrev_b32 v9, 2, v3")
    e("v_add_u32 v9, s24, v9")
    if epi == "qkv":
        srd_from_kernarg(12, KA_WS, 4 * ACT, add=WS_Q)
        e("s_lshr_b32 s26, s24, 9")
        e("s_cmp_eq_u32 s26, 2")
        e("s_cbranch_scc1 L_%s_v%s" % (name, sfx))
        e("s_cmp_eq_u32 s26, 0")
        e("s_cselect_b32 s27, 0x3eb8aa3b, 1.0")
        e("s_mul_i32 s26, s26, %d" % ACT)
        for i in range(4):
            e("v_add_u32 v10, %d, v9" % (8 * i))
            e("v_lshrrev_b32 v11, 4, v10")
            e("v_and_b32 v11, 31, v11")
            e("v_lshlrev_b32 v11, 11, v11")
            e("v_add_u32 v11, v11, v4")
            e("v_lshlrev_b32 v11, 4, v11")
            e("v_and_b32 v12, 15, v10")
            e("v_add_u32 v11, v11, v12")
            e("v_lshlrev_b32 v11, 1, v11")
            for j in range(4):
                round_bf16(16 + 4 * i + j, 13)
                e("v_mul_f32 v%d, s27, v%d" % (16 + 4 * i + j, 16 + 4 * i + j))
            e("v_cvt_pk_bf16_f32 v14, v%d, v%d" % (16 + 4 * i, 17 + 4 * i))
            e("v_cvt_pk_bf16_f32 v15, v%d, v%d" % (18 + 4 * i, 19 + 4 * i))
            e("buffer_store_dwordx2 v[14:15], v11, s[12:15], s26 offen")
        e("s_branch L_%s_skip%s" % (name, sfx))
        lab("L_%s_v%s" % (name, sfx))
        e("s_mov_b32 s26, %d" % (2 * ACT))
        for i in range(4):
            for j in range(4):
                e("v_add_u32 v10, %d, v9" % (8 * i + j))
                e("v_lshrrev_b32 v11, 4, v10")
                e("v_and_b32 v11, 31, v11")
                e("v_lshlrev_b32 v11, 7, v11")
                e("v_lshrrev_b32 v12, 4, v4")
                e("v_add_u32 v11, v11, v12")
                e("v_lshlrev_b32 v11, 10, v11")
                e("v_and_b32 v10, 15, v10")
                e("v_lshlrev_b32 v10, 4, v10")
                e("v_add_u32 v11, v11, v10")
                e("v_lshrrev_b32 v12, 2, v4")
                e("v_and_b32 v12, 1, v12")
                e("v_lshlrev_b32 v12, 9, v12")
                e("v_add_u32 v11, v11, v12")
                e("v_and_b32 v12, 3, v4")
                e("v_lshlrev_b32 v12, 1, v12")
                e("v_add_u32 v11, v11, v12")
                e("v_lshrrev_b32 v12, 3, v4")
                e("v_and_b32 v12, 1, v12")
                e("v_lshlrev_b32 v12, 3, v12")
                e("v_add_u32 v10, v11, v12")
                e("v_cvt_pk_bf16_f32 v14, v%d, v%d" % (16 + 4 * i + j, 16 + 4 * i + j))
                e("buffer_store_short v14, v10, s[12:15], s26 offen")
    else:
        NO = N
        srd_from_kernarg(12, KA_OUT if epi == "final" else KA_WS, S * NO * 2, add=0 if epi == "final" else dst)
        if res is not None:
            srd_from_kernarg(28, KA_X if res == "x" else KA_WS, ACT, add=0 if res == "x" else res)
        if res2 is not None:
            srd_from_kernarg(32, KA_WS, ACT, add=res2)
        e("s_mov_b32 s25, %d" % (NO * 2))
        e("v_mul_lo_u32 v10, v4, s25")
        e("v_lshlrev_b32 v11, 1, v9")
        e("v_add_u32 v10, v10, v11")
        for i in range(4):
            e("v_add_u32 v11, %d, v9" % (8 * i))
            tile_off(60 + i, 4, 11, NO, 12, 13)
            e("v_add_u32 v%d, %d, v10" % (64 + i, 16 * i))
        if res is not None:
            for i in range(4):
                e("buffer_load_dwordx2 v[%d:%d], v%d, s[28:31], 0 offen" % (40 + 2 * i, 41 + 2 * i, (64 if res == "x" else 60) + i))
        if res2 is not None:
            for i in range(4):
                e("buffer_load_dwordx2 v[%d:%d], v%d, s[32:35], 0 offen" % (50 + 2 * i, 51 + 2 * i, 60 + i))
        e("s_waitcnt vmcnt(0)")
        for i in range(4):
            for j in range(4):
                v = 16 + 4 * i + j
                round_bf16(v, 13)
                if epi == "gelu":
                    gelu_regs(v, 13, 14)
                if res is not None:
                    src = 40 + 2 * i + j // 2
                    if j % 2 == 0:
                        e("v_lshlrev_b32 v13, 16, v%d" % src)
                    else:
                        e("v_and_b32 v13, 0xffff0000, v%d" % src)
                    e("v_add_f32 v%d, v%d, v13" % (v, v))
                if res2 is not None:
                    round_bf16(v, 13)
                    src = 50 + 2 * i + j // 2
                    if j % 2 == 0:
                        e("v_lshlrev_b32 v13, 16, v%d" % src)
                    else:
                        e("v_and_b32 v13, 0xffff0000, v%d" % src)
                    e("v_add_f32 v%d, v%d, v13" % (v, v))
            e("v_cvt_pk_bf16_f32 v14, v%d, v%d" % (16 + 4 * i, 17 + 4 * i))
            e("v_cvt_pk_bf16_f32 v15, v%d, v%d" % (18 + 4 * i, 19 + 4 * i))
            e("buffer_store_dwordx2 v[14:15], v%d, s[12:15], 0 offen" % ((64 if epi == "final" else 60) + i))


def gen_attn():
    name = "attn_kernel"
    total = H * 64
    begin_kernel(name)
    wave_task(20, total, name)
    e("s_lshr_b32 s21, s20, 6")
    e("s_and_b32 s22, s20, 63")
    srd_from_kernarg(4, KA_WS, 4 * ACT, add=WS_Q)
    srd_from_kernarg(8, KA_WS, ACT, add=WS_O)
    e("v_and_b32 v2, 31, v0")
    e("v_lshrrev_b32 v3, 5, v0")
    e("s_lshl_b32 s23, s21, 16")
    e("s_lshl_b32 s24, s22, 5")
    e("v_add_u32 v4, s24, v2")
    e("v_lshlrev_b32 v5, 5, v4")
    e("v_lshlrev_b32 v6, 4, v3")
    e("v_add_u32 v5, v5, v6")
    e("buffer_load_dwordx4 v[8:11], v5, s[4:7], s23 offen")
    e("v_lshlrev_b32 v7, 5, v2")
    e("v_add_u32 v7, v7, v6")
    e("s_add_u32 s25, s23, %d" % ACT)
    e("v_lshlrev_b32 v12, 12, v2")
    e("v_lshlrev_b32 v13, 3, v3")
    e("v_add_u32 v12, v12, v13")
    e("s_add_u32 s26, s23, %d" % (2 * ACT))
    e("v_mov_b32 v14, 0xff800000")
    e("s_waitcnt vmcnt(0)")
    KB = [(16, 20), (24, 28)]
    def kload(pair, blk_s):
        for t in range(2):
            e("s_add_u32 s28, %s, %d" % (blk_s, t))
            e("s_lshl_b32 s28, s28, 10")
            e("s_add_u32 s28, s28, s25")
            e("buffer_load_dwordx4 v[%d:%d], v7, s[4:7], s28 offen" % (pair[t], pair[t] + 3))
    e("s_mov_b32 s27, 0")
    kload(KB[0], "s27")
    lab("L_attn_p1")
    for ph in range(2):
        cur, nxt = KB[ph], KB[1 - ph]
        e("s_add_u32 s27, s27, 2")
        kload(nxt, "s27")
        e("s_waitcnt vmcnt(2)")
        e("v_mfma_f32_32x32x16_bf16 v[32:47], v[%d:%d], v[8:11], 0" % (cur[0], cur[0] + 3))
        e("v_mfma_f32_32x32x16_bf16 v[96:111], v[%d:%d], v[8:11], 0" % (cur[1], cur[1] + 3))
        e("s_nop 7")
        e("s_nop 3")
        for i in range(8):
            e("v_max3_f32 v14, v14, v%d, v%d" % (32 + 2 * i, 33 + 2 * i))
        e("s_nop 3")
        for i in range(8):
            e("v_max3_f32 v14, v14, v%d, v%d" % (96 + 2 * i, 97 + 2 * i))
    e("s_cmp_lt_u32 s27, 64")
    e("s_cbranch_scc1 L_attn_p1")
    e("s_waitcnt vmcnt(0)")
    e("v_xor_b32 v15, 32, v0")
    e("v_lshlrev_b32 v15, 2, v15")
    e("ds_bpermute_b32 v20, v15, v14")
    e("s_waitcnt lgkmcnt(0)")
    e("v_max_f32 v14, v14, v20")
    for r in range(16):
        e("v_sub_f32 v%d, 0, v14" % (48 + r))
    for r in range(16):
        e("v_mov_b32 v%d, 0" % (64 + r))
    e("v_cmp_eq_u32 vcc, 16, v2")
    e("v_mov_b32 v20, 0")
    e("v_mov_b32 v21, 0x3f803f80")
    e("v_cndmask_b32 v20, v20, v21, vcc")
    VB = [128, 160]
    for vb in VB:
        for r in range(16):
            e("v_mov_b32 v%d, v20" % (vb + r))
    e("v_cmp_gt_u32 s[30:31], 16, v2")
    e("v_lshlrev_b32 v12, 4, v0")
    e("s_lshl_b32 s26, s21, 17")
    e("s_add_u32 s26, s26, %d" % (2 * ACT))
    def vload(vb, blk_s):
        e("s_lshl_b32 s29, %s, 11" % blk_s)
        e("s_add_u32 s29, s29, s26")
        e("s_mov_b64 s[32:33], exec")
        e("s_mov_b64 exec, s[30:31]")
        for u in range(4):
            e("buffer_load_dwordx4 v[%d:%d], v12, s[4:7], s29 offen offset:%d" % (vb + 4 * u, vb + 4 * u + 3, 1024 * u))
        e("s_mov_b64 exec, s[32:33]")
    e("s_mov_b32 s27, 0")
    kload(KB[0], "s27")
    vload(VB[0], "s27")
    lab("L_attn_p2")
    for ph in range(2):
        cur, nxt = KB[ph], KB[1 - ph]
        e("s_add_u32 s27, s27, 2")
        kload(nxt, "s27")
        vload(VB[1 - ph], "s27")
        e("s_waitcnt vmcnt(6)")
        e("v_mfma_f32_32x32x16_bf16 v[32:47], v[%d:%d], v[8:11], v[48:63]" % (cur[0], cur[0] + 3))
        e("v_mfma_f32_32x32x16_bf16 v[96:111], v[%d:%d], v[8:11], v[48:63]" % (cur[1], cur[1] + 3))
        e("s_nop 7")
        e("s_nop 3")
        for t, sb in enumerate((32, 96)):
            for r in range(16):
                e("v_exp_f32 v%d, v%d" % (sb + r, sb + r))
            e("s_nop 0")
            pb = 112 + 8 * t
            for r in range(8):
                e("v_cvt_pk_bf16_f32 v%d, v%d, v%d" % (pb + r, sb + 2 * r, sb + 2 * r + 1))
            e("s_nop 1")
            vb = VB[ph] + 8 * t
            e("v_mfma_f32_32x32x16_bf16 v[64:79], v[%d:%d], v[%d:%d], v[64:79]" % (vb, vb + 3, pb, pb + 3))
            e("v_mfma_f32_32x32x16_bf16 v[64:79], v[%d:%d], v[%d:%d], v[64:79]" % (vb + 4, vb + 7, pb + 4, pb + 7))
    e("s_cmp_lt_u32 s27, 64")
    e("s_cbranch_scc1 L_attn_p2")
    e("s_waitcnt vmcnt(0)")
    e("s_nop 7")
    e("s_nop 7")
    e("v_lshlrev_b32 v15, 2, v2")
    e("ds_bpermute_b32 v20, v15, v72")
    e("s_waitcnt lgkmcnt(0)")
    e("v_rcp_f32 v20, v20")
    e("s_nop 0")
    for r in range(8):
        e("v_mul_f32 v%d, v%d, v20" % (64 + r, 64 + r))
    e("s_lshl_b32 s28, s21, 4")
    for i in range(2):
        e("v_lshlrev_b32 v24, 2, v3")
        e("v_add_u32 v24, s28, v24")
        e("v_add_u32 v24, %d, v24" % (8 * i))
        tile_off(21, 4, 24, 512, 25, 26)
        e("v_cvt_pk_bf16_f32 v22, v%d, v%d" % (64 + 4 * i, 65 + 4 * i))
        e("v_cvt_pk_bf16_f32 v23, v%d, v%d" % (66 + 4 * i, 67 + 4 * i))
        e("buffer_store_dwordx2 v[22:23], v21, s[8:11], 0 offen")
    end_kernel(name, total // 4, vgprs=192)


def main():
    order = []
    gen_prep(); order.append("prep_kernel")
    gen_gemm("qkv_kernel", 512, 1536, WS_XN, WS_WTQKV, "qkv", TM=2, TN=2)
    gen_attn()
    gen_gemm("wo_kernel", 512, 512, WS_O, WS_WTO, "res", dst=WS_H, res="x", TM=1, TN=1)
    gen_ln("ln2_kernel", WS_H, WS_LN2, WS_LNB)
    gen_gemm("w1_kernel", 512, 512, WS_LNB, WS_WT1, "gelu", dst=WS_HH, TM=1, TN=1)
    gen_gemm("w2_kernel", 512, 512, WS_HH, WS_WT2, "res", dst=WS_X1, res=WS_LN2, shift=True, TM=1, TN=1)
    gen_ln("ln3_kernel", WS_X1, WS_LNB)
    gen_gemm("w3_kernel", 512, 1376, WS_LNB, WS_WT3, "gelu", dst=WS_G3, TM=2, TN=2)
    gen_gemm("w4_kernel", 1376, 512, WS_G3, WS_WT4, "final", res=WS_X1, res2=WS_H, TM=1, TN=1)
    seq = ["prep_kernel", "qkv_kernel", "attn_kernel", "wo_kernel", "ln2_kernel", "w1_kernel",
           "w2_kernel", "ln3_kernel", "w3_kernel", "w4_kernel"]
    kd = {k[0]: k for k in kernels}
    hdr = []
    for k in seq:
        _, grid, vg, lds = kd[k]
        hdr.append("; @launch kernel=%s grid=(%d,1,1) block=(256,1,1) lds=%d" % (k, grid, lds))
    out = hdr + ['.amdgcn_target "amdgcn-amd-amdhsa--gfx950"', ".text"] + L + ['.section .rodata,"a"']
    for (k, grid, vg, lds) in kernels:
        out += [".p2align 6", ".amdhsa_kernel %s" % k,
                "  .amdhsa_next_free_vgpr %d" % vg, "  .amdhsa_next_free_sgpr 102",
                "  .amdhsa_accum_offset %d" % vg, "  .amdhsa_group_segment_fixed_size 0",
                "  .amdhsa_kernarg_size 88", "  .amdhsa_user_sgpr_count 2",
                "  .amdhsa_user_sgpr_kernarg_segment_ptr 1", "  .amdhsa_system_sgpr_workgroup_id_x 1",
                ".end_amdhsa_kernel"]
    open(OUT, "w").write("\n".join(out) + "\n")


main()
```
